```python
import torch

def _softmax(x, axis=-1):
    return torch.softmax(x, dim=axis)
def _gelu(x):
    return torch.nn.functional.gelu(x, approximate="tanh")
def _silu(x):
    return torch.nn.functional.silu(x)
def _sigmoid(x):
    return torch.sigmoid(x)
def _layernorm(x, axis=-1, eps=1e-5):
    m = x.mean(dim=axis, keepdim=True)
    v = x.var(dim=axis, keepdim=True, unbiased=False)
    return (x - m) / torch.sqrt(v + eps)
def _scatter_add(tgt, idx, src, axis=0):
    return tgt.clone().index_add_(axis, idx, src)
def _segment_sum(src, seg, n):
    out = torch.zeros((n,) + src.shape[1:], dtype=src.dtype)
    return out.index_add_(0, seg, src)
def _pad(x, pw):
    flat = tuple(v for pair in reversed(pw) for v in pair)
    return torch.nn.functional.pad(x, flat)

kernel_name = 'gated_mix__grouped_kv_mqa__dense_activation_squared_relu__prompt'

def setup_inputs():

    _w = (lambda a: (lambda t: t.to(torch.bfloat16) if t.is_floating_point() else t)(torch.as_tensor(a)))
    def _A_setup():
        B, S, D, H = 1, 2048, 1024, 32
        Dh = D // H
        return {
            "x": _w((lambda *s: torch.randn(*s, dtype=torch.bfloat16) * 0.05)(B, S, D)),
            "wq": _w((lambda *s: torch.randn(*s, dtype=torch.bfloat16) * 0.8)(D, H * Dh)),
            "wk": _w((lambda *s: torch.randn(*s, dtype=torch.bfloat16) * 0.8)(D, Dh)),
            "wv": _w((lambda *s: torch.randn(*s, dtype=torch.bfloat16) * 0.1)(D, Dh)),
            "wo": _w((lambda *s: torch.randn(*s, dtype=torch.bfloat16) * 0.1)(H * Dh, D)),
        }
    _A_in = _A_setup()

    def _B_setup():
        B, S, D, F = 1, 2048, 1024, 3584
        return {
            "x": _w((lambda *s: torch.randn(*s, dtype=torch.bfloat16) * 0.05)(B, S, D)),
            "w1": _w((lambda *s: torch.randn(*s, dtype=torch.bfloat16) * 0.05)(D, F)),
            "b1": _w((lambda *s: torch.randn(*s, dtype=torch.bfloat16) * 0.05)(F)),
            "w2": _w((lambda *s: torch.randn(*s, dtype=torch.bfloat16) * 0.05)(F, D)),
            "b2": _w((lambda *s: torch.randn(*s, dtype=torch.bfloat16) * 0.05)(D)),
        }
    _B_in = _B_setup()

    return {
        "A_x": _A_in["x"],
        "A_wq": _A_in["wq"],
        "A_wk": _A_in["wk"],
        "A_wv": _A_in["wv"],
        "A_wo": _A_in["wo"],
        "B_x": _B_in["x"],
        "B_w1": _B_in["w1"],
        "B_b1": _B_in["b1"],
        "B_w2": _B_in["w2"],
        "B_b2": _B_in["b2"],
        "gate_w": _w((lambda *s: torch.randn(*s, dtype=torch.bfloat16) * 0.05)(1024) * 16.0),
    }

def reference(A_x, A_wq, A_wk, A_wv, A_wo, B_x, B_w1, B_b1, B_w2, B_b2, gate_w):
    def _A_ref(x, wq, wk, wv, wo):
        B, S, D = x.shape
        H = 32
        Dh = D // H
        q = (lambda x, *d: x.permute(*d))((x @ wq).reshape(B, S, H, Dh), 0, 2, 1, 3)
        k = x @ wk
        v = x @ wv
        scores = torch.einsum("bhqd,bkd->bhqk", q, k) * (Dh ** -0.5)
        p = _softmax(scores, axis=-1)
        o = torch.einsum("bhqk,bkd->bhqd", p, v)
        return (lambda x, *d: x.permute(*d))(o, 0, 2, 1, 3).reshape(B, S, H * Dh) @ wo

    def _B_ref(x, w1, b1, w2, b2):
        h = torch.einsum("bsd,df->bsf", x, w1) + b1
        zero = torch.zeros_like(h)
        r = torch.where(h > zero, h, zero)
        h = r * r
        out = torch.einsum("bsf,fd->bsd", h, w2) + b2
        return out

    x = A_x
    g = _sigmoid((x * gate_w).sum(-1, keepdims=True))
    a = _A_ref(x, A_wq, A_wk, A_wv, A_wo)
    b = _B_ref(x, B_w1, B_b1, B_w2, B_b2)
    return g * a + (1 - g) * b
```

```python
import re, sys
def regs(tok):
    tok = tok.strip()
    tok = tok.replace("abs(", "").replace(")", "").replace("|", "").lstrip("-")
    m = re.fullmatch(r"([vsa])\[(\d+):(\d+)\]", tok)
    if m: return {(m.group(1), i) for i in range(int(m.group(2)), int(m.group(3)) + 1)}
    m = re.fullmatch(r"([vsa])(\d+)", tok)
    if m: return {(m.group(1), int(m.group(2)))}
    if tok == "vcc": return {("s", "vcc")}
    if tok == "exec": return {("s", "exec")}
    if tok == "m0": return {("s", "m0")}
    return set()
TRANS = ("v_exp_f32", "v_log_f32", "v_rcp_f32", "v_rsq_f32", "v_sqrt_f32", "v_sin_f32", "v_cos_f32")
def parse(line):
    l = line.split(";")[0].strip()
    if not l or l.startswith(".") : return None
    if l.endswith(":"): return ("label", l[:-1])
    p = l.split(None, 1); op = p[0]
    args = []
    if len(p) > 1:
        rest = p[1]
        args = [a.strip() for a in rest.split(",")]
        last = args[-1].split()
        args[-1] = last[0]; mods = last[1:]
    else: mods = []
    d = dict(op=op, args=args, mods=mods, text=l)
    R = [regs(a) for a in args]
    w = set(); r = set(); kind = "other"; srcC = set(); passes = 0
    if op.startswith("v_mfma") or op.startswith("v_smfmac"):
        kind = "mfma"; w = R[0]; d["A"] = R[1]; d["B"] = R[2]
        if op.startswith("v_smfmac"): srcC = R[0]; d["B"] = R[2] | R[3]; passes = 8 if "32x32" in op else 4
        else: srcC = R[3]; passes = 8 if "32x32" in op else 4
        if op.startswith("v_smfmac"): passes = 8
        r = d["A"] | d["B"] | srcC
    elif op.startswith("v_cmp"):
        kind = "valu"; w = R[0]; r = set().union(*R[1:])
        if op.startswith("v_cmpx"): w |= {("s", "exec")}
    elif op.startswith("v_readfirstlane") or op.startswith("v_readlane"):
        kind = "valu"; w = R[0]; r = set().union(*R[1:])
    elif op.startswith("v_permlane"):
        kind = "valu"; w = R[0] | R[1]; r = R[0] | R[1]
    elif op.startswith("v_"):
        kind = "valu"; w = R[0]; r = set().union(*R[1:]) if len(R) > 1 else set()
        if "_co_" in op: w |= R[1]
        if op.startswith("v_fmac"): r |= R[0]
    elif op.startswith("buffer_") or op.startswith("global_"):
        kind = "vmem"
        if "lds" in mods: r = set().union(*R) | {("s", "m0")}; d["dma"] = True
        elif "store" in op or "atomic" in op: r = set().union(*R); d["sdata"] = R[0] if op.startswith("buffer") else R[1]
        elif op in ("buffer_inv", "buffer_wbl2"): pass
        else: w = R[0]; r = set().union(*R[1:])
    elif op.startswith("ds_"):
        kind = "ds"
        if "read" in op or "bpermute" in op: w = R[0]; r = set().union(*R[1:])
        else: r = set().union(*R)
    elif op.startswith("s_"):
        kind = "salu"
        if op.startswith(("s_cmp", "s_cbranch", "s_branch", "s_waitcnt", "s_nop", "s_barrier", "s_setprio", "s_sleep", "s_endpgm")):
            r = set().union(*R) if R else set()
        else:
            w = R[0] if R else set(); r = set().union(*R[1:]) if len(R) > 1 else set()
            if "saveexec" in op: w |= {("s", "exec")}
    d.update(kind=kind, w=w, r=r, srcC=srcC, passes=passes)
    d["states"] = int(args[0]) + 1 if op == "s_nop" else 1
    return d
def vonly(s): return {x for x in s if x[0] in "va"}
def sonly(s): return {x for x in s if x[0] == "s"}
def need(p, c):
    n = 0
    PW = {4: 8, 8: 12}; PC = {4: 6, 8: 10}; PWAR = {4: 3, 8: 7}
    if p["kind"] == "valu":
        vw = vonly(p["w"]); sw = sonly(p["w"])
        if c["kind"] == "mfma" and vw & c["r"]: n = max(n, 2)
        if c["kind"] == "mfma" and ("s", "exec") in sw: n = max(n, 4)
        if c["op"].startswith(("v_readfirstlane", "v_readlane")) and vw & c["r"]: n = max(n, 1)
        if c["op"].startswith("v_permlane") and vw & c["r"]: n = max(n, 2)
        if p["op"].startswith(TRANS) and c["kind"] in ("valu", "mfma") and not c["op"].startswith(TRANS) and vw & c["r"]: n = max(n, 1)
        if c["kind"] == "vmem" and sw & c["r"]: n = max(n, 5)
        if c["kind"] == "valu" and sw & c["r"]: n = max(n, 2)
        if "dpp" in c["text"] and vw & c["r"]: n = max(n, 2)
    if p["kind"] == "salu":
        if ("s", "m0") in p["w"] and c.get("dma"): n = max(n, 1)
    if p["kind"] == "mfma":
        D = p["w"]
        if c["kind"] == "mfma":
            if D & (c["A"] | c["B"]): n = max(n, PW[p["passes"]])
            if D & c["srcC"] and not (D == c["srcC"] and p["op"] == c["op"]): n = max(n, PC[p["passes"]])
            if D & c["w"] and not (D & c["srcC"]): n = max(n, PC[p["passes"]])
        elif c["kind"] in ("valu", "vmem", "ds"):
            if D & (c["r"] | c["w"]): n = max(n, PW[p["passes"]])
        if c["kind"] == "valu" and p["srcC"] & c["w"]: n = max(n, PWAR[p["passes"]])
    if p["kind"] == "vmem" and "sdata" in p and ("x4" in p["op"] or "x3" in p["op"]):
        if p["sdata"] & c["w"]: n = max(n, 2 if c["kind"] == "valu" else 1)
    return n
def check_seq(seq, out):
    for i, c in enumerate(seq):
        dist = 0
        for j in range(i - 1, max(-1, i - 24), -1):
            p = seq[j]
            n = need(p, c)
            if n > dist: out.add((p["ln"], c["ln"], n, dist, p["text"], c["text"]))
            dist += p["states"]
            if dist >= 20: break
def lint(text):
    ins = []; labels = {}
    for ln, line in enumerate(text.splitlines(), 1):
        if line.strip().startswith(".section"): break
        d = parse(line)
        if d is None: continue
        if isinstance(d, tuple): labels[d[1]] = len(ins); continue
        d["ln"] = ln; ins.append(d)
    out = set()
    seq = []
    for d in ins:
        seq.append(d)
        if d["op"] in ("s_branch", "s_endpgm"): check_seq(seq, out); seq = []
    check_seq(seq, out)
    for i, d in enumerate(ins):
        if d["op"].startswith(("s_cbranch", "s_branch")):
            t = labels[d["args"][0]]
            pre = []
            for j in range(i, max(-1, i - 24), -1):
                if j < i and ins[j]["op"] in ("s_branch", "s_endpgm"): break
                pre.insert(0, ins[j])
            post = []
            for j in range(t, min(len(ins), t + 24)):
                post.append(ins[j])
                if ins[j]["op"] in ("s_branch", "s_endpgm"): break
            check_seq(pre + post, out)
    return sorted(out)
if __name__ == "__main__":
    r = lint(open(sys.argv[1]).read())
    for x in r: print(f"HAZARD need {x[2]} have {x[3]}: L{x[0]} `{x[4]}` -> L{x[1]} `{x[5]}`")
    print(len(r), "hazards")
```

```python
import sys, math, struct
NAME = "gated_mix__grouped_kv_mqa__dense_activation_squared_relu__prompt"

DEF = dict(PROF=0, PSTART=3, HP=1, SPIN=1 << 20, TOUCH=1, FORCE_FB=0)

HF = 0x0; OF = 0xE00000; PF = 0x1200000; KVF = 0x1A00000; GF = 0x1A40000
FKV = 0x1A50000; FH = FKV + 0x1000; FO = FKV + 0x2000; FP = FKV + 0x4000
PROFOFF = 0x1A60000; WS_SIZE = 0x1B00000
SLOT = 53248; XO = 0; QO = 16384; WO1 = 24576; SPARE = 3 * SLOT
KVRING = 0; WRING = 49152; GRP = 28672
SCR = SLOT
LDS_BYTES = 163840

def f2u(x): return struct.unpack("<I", struct.pack("<f", x))[0]
def vr(a, n): return f"v[{a}:{a+n-1}]"
def sr(a, n): return f"s[{a}:{a+n-1}]"

def lead_seq(j):
    s = [j]
    for t in range(1, 16):
        u = t - 1
        s.append(u + (1 if j <= u - 12 else 0) if u >= 12 else u + (4 if (u & 3) == j else 0))
    assert sorted(s) == list(range(16))
    return s

def gen(**kw):
    P = dict(DEF); P.update(kw)
    L = []
    def A(s): L.append(s)
    uid = [0]
    def lab(p): uid[0] += 1; return f"L_{p}_{uid[0]}"
    sWave, sW, sRb1, sCb1, sRb2, sKh, sCbb, sT0, sT1, sT2, sT3 = 3, 4, 5, 6, 7, 8, 9, 12, 13, 14, 15
    pX, pWq, pWk, pWv, pWo, pW1, pB1, pW2, pB2, pGate, pOut, pDbg, pWs = 16, 18, 20, 22, 24, 28, 30, 32, 34, 36, 38, 40, 42
    rA, rB, rC, rD, rE, rWs = 44, 48, 52, 56, 60, 64
    sCnt, sU0, sU1, sU2, sU3, sU4, sU5, sU6 = 68, 69, 70, 71, 72, 73, 74, 75
    sTab = 10
    STAMP0 = 76
    vLane = 1
    def srd(r, p, size):
        A(f"  s_mov_b32 s{r}, s{p}\n  s_mov_b32 s{r+1}, s{p+1}\n  s_mov_b32 s{r+2}, {size}\n  s_mov_b32 s{r+3}, 0x20000")
    def stamp(i):
        if P["PROF"]: A(f"  s_memtime s[{STAMP0+2*i}:{STAMP0+2*i+1}]")
    def dump_stamps():
        if not P["PROF"]: return
        A(f"  s_waitcnt lgkmcnt(0)\n  s_mov_b64 exec, 1\n  s_lshl_b32 s{sT0}, s2, 3\n  s_add_u32 s{sT0}, s{sT0}, s{sWave}\n  s_lshl_b32 s{sT0}, s{sT0}, 6\n  s_add_u32 s{sT0}, s{sT0}, {PROFOFF}\n  v_mov_b32 v2, 0")
        for i in range(13):
            A(f"  v_mov_b32 v3, s{STAMP0+2*i}\n  buffer_store_dword v3, v2, {sr(rWs,4)}, s{sT0} offen offset:{4*i}")
    def poll(vaddr, r, soff, width, expect):
        lp, dn = lab("poll"), lab("pdone")
        A(f"  s_mov_b32 s{sT3}, {P['SPIN']}\n{lp}:")
        if width == 1:
            A(f"  buffer_load_dword v4, v{vaddr}, {sr(r,4)}, {soff} offen sc1\n  s_waitcnt vmcnt(0)")
        else:
            A(f"  buffer_load_dwordx4 v[4:7], v{vaddr}, {sr(r,4)}, {soff} offen sc1\n  s_waitcnt vmcnt(0)")
            A("  v_and_b32 v4, v4, v5\n  v_and_b32 v6, v6, v7\n  v_and_b32 v4, v4, v6")
        A(f"  v_cmp_eq_u32 vcc, {expect}, v4\n  s_nop 1\n  s_cmp_eq_u64 vcc, exec\n  s_cbranch_scc1 {dn}")
        A(f"  s_sleep 2\n  s_sub_u32 s{sT3}, s{sT3}, 1\n  s_cmp_lg_u32 s{sT3}, 0\n  s_cbranch_scc1 {lp}\n{dn}:")
    def flag_store(soff):
        A(f"  s_mov_b64 exec, 1\n  v_mov_b32 v2, 0\n  v_mov_b32 v3, 1\n  buffer_store_dword v3, v2, {sr(rWs,4)}, {soff} offen sc1\n  s_mov_b64 exec, -1")
    def mfma(d, a, b, c=None):
        A(f"  v_mfma_f32_32x32x16_bf16 {vr(d,16)}, {vr(a,4)}, {vr(b,4)}, {vr(d,16) if c is None else c}")
    def dma(voff, r, soff, flags=""):
        A(f"  buffer_load_dwordx4 v{voff}, {sr(r,4)}, {soff} offen{flags} lds")

    A(f"""  s_cmp_ge_u32 s2, 256
  s_cbranch_scc1 L_exit
  s_load_dwordx16 s[16:31], s[0:1], 0
  s_load_dwordx8 s[32:39], s[0:1], 64
  s_load_dwordx4 s[40:43], s[0:1], 96""")
    if P["PROF"]:
        A(f"  s_memrealtime s[{STAMP0+24}:{STAMP0+25}]")
        for i in range(1, 12): A(f"  s_mov_b32 s{STAMP0+2*i}, 0")
    stamp(0)
    A(f"""  v_lshrrev_b32 v2, 6, v0
  v_and_b32 v{vLane}, 63, v0
  v_readfirstlane_b32 s{sWave}, v2
  s_lshr_b32 s{sT0}, s2, 3                 ; idx
  s_and_b32 s{sRb1}, s2, 1
  s_lshl_b32 s{sRb1}, s{sRb1}, 3
  s_and_b32 s{sT1}, s{sT0}, 7
  s_add_u32 s{sRb1}, s{sRb1}, s{sT1}
  s_bfe_u32 s{sCb1}, s2, 0x20001
  s_lshl_b32 s{sCb1}, s{sCb1}, 2
  s_lshr_b32 s{sT1}, s{sT0}, 3
  s_add_u32 s{sCb1}, s{sCb1}, s{sT1}
  s_and_b32 s{sRb2}, s2, 3
  s_lshl_b32 s{sRb2}, s{sRb2}, 2
  s_and_b32 s{sT1}, s{sT0}, 3
  s_add_u32 s{sRb2}, s{sRb2}, s{sT1}
  s_bfe_u32 s{sKh}, s2, 0x10002
  s_lshr_b32 s{sCbb}, s{sT0}, 2
  s_and_b32 s{sW}, s{sWave}, 3
  s_waitcnt lgkmcnt(0)""")
    srd(rWs, pWs, WS_SIZE)
    A(f"  s_cmp_ge_u32 s{sWave}, 4\n  s_cbranch_scc1 L_prole")

    ACC = 16; QA, QB, H0A, H0B, H1A, H1B, H2A, H2B, H6A = [ACC + 16 * i for i in range(9)]
    FB = [160, 188]
    aXA, aXB, aWq, aW, aW6 = 216, 220, 224, 225, 226
    sTh, sCh, sTA, sTB, sDelta, sSlot = sU0, sU1, sU2, sU3, sU4, sU5
    A("  s_setprio 2")
    A(f"""  s_lshr_b32 s{sTh}, s{sW}, 1
  s_and_b32 s{sCh}, s{sW}, 1
  s_mov_b32 s{sTA}, s{sW}
  s_xor_b32 s{sTB}, s{sW}, 1""")
    srd(rA, pB1, 3584 * 2)
    srd(rB, pDbg, 256)
    A(f"""  v_and_b32 v2, 31, v{vLane}
  v_lshlrev_b32 v3, 1, v2
  s_mul_i32 s{sT0}, s{sCb1}, 448
  s_mul_i32 s{sT1}, s{sCh}, 192
  s_add_u32 s{sT1}, s{sT1}, s{sT0}""")
    for i in range(3): A(f"  buffer_load_ushort v{FB[0]+4*i}, v3, {sr(rA,4)}, s{sT1} offen offset:{64*i}")
    A(f"  buffer_load_ushort v{FB[0]+12}, v3, {sr(rA,4)}, s{sT0} offen offset:384")
    lz = lab("noz")
    A(f"""  s_cmp_lg_u32 s{sW}, 0
  s_cbranch_scc1 {lz}
  s_mov_b64 exec, 1
  v_mov_b32 v4, 0
  v_mov_b32 v5, 0
  v_mov_b32 v6, 0
  v_mov_b32 v7, 0
  s_lshl_b32 s{sT0}, s{sRb1}, 7
  s_lshl_b32 s{sT1}, s{sCb1}, 2
  s_add_u32 s{sT0}, s{sT0}, s{sT1}
  s_add_u32 s{sT0}, s{sT0}, {FKV}
  buffer_store_dword v4, v4, {sr(rWs,4)}, s{sT0} offen sc1
  s_lshl_b32 s{sT0}, s{sRb1}, 8
  s_lshl_b32 s{sT1}, s{sCb1}, 4
  s_add_u32 s{sT0}, s{sT0}, s{sT1}
  s_add_u32 s{sT1}, s{sT0}, {FH}
  buffer_store_dwordx4 v[4:7], v4, {sr(rWs,4)}, s{sT1} offen sc1
  s_add_u32 s{sT1}, s{sT0}, {FO}
  buffer_store_dwordx4 v[4:7], v4, {sr(rWs,4)}, s{sT1} offen sc1
  s_lshl_b32 s{sT1}, s2, 7
  s_add_u32 s{sT1}, s{sT1}, {FP}
  buffer_store_dwordx4 v[4:7], v4, {sr(rWs,4)}, s{sT1} offen sc1
  v_mov_b32 v8, 1
  s_waitcnt vmcnt(0)
  buffer_store_byte v8, v4, {sr(rB,4)}, s2 offen sc1
  s_mov_b64 exec, -1
{lz}:""")
    A(f"""  v_lshrrev_b32 v4, 5, v{vLane}          ; h
  v_lshrrev_b32 v5, 1, v2
  v_and_b32 v5, 7, v5
  v_xor_b32 v5, v5, v4
  v_lshlrev_b32 v5, 4, v5
  v_lshl_add_u32 v5, v2, 7, v5
  s_lshl_b32 s{sT0}, s{sTA}, 12
  s_lshl_b32 s{sT1}, s{sTB}, 12""")
    for ks in range(4):
        A(f"  v_xor_b32 v6, {ks<<5}, v5\n  v_add_u32 v{aXA+ks}, s{sT0}, v6\n  v_add_u32 v{aXB+ks}, s{sT1}, v6")
    A(f"""  v_bfe_u32 v5, v{vLane}, 2, 2           ; r
  v_and_b32 v6, 3, v{vLane}               ; c
  v_bfe_u32 v7, v{vLane}, 4, 1            ; nhalf
  v_lshlrev_b32 v6, 3, v6
  v_lshl_add_u32 v6, v7, 5, v6            ; nhalf*32 + c*8
  v_lshl_add_u32 v7, v4, 3, v5            ; 8h + r
  v_mul_u32_u24 v8, 448, v7
  v_add_u32 v8, v8, v6
  v_add_u32 v{aW6}, {WO1 + 384}, v8
  s_mul_i32 s{sT0}, s{sCh}, 192
  s_add_u32 s{sT0}, s{sT0}, {WO1}
  v_add_u32 v{aW}, s{sT0}, v8
  v_lshrrev_b32 v5, 1, v5
  v_xor_b32 v5, s{sCh}, v5
  v_lshl_add_u32 v6, v5, 6, v6
  v_lshl_add_u32 v6, v7, 7, v6
  v_add_u32 v{aWq}, {QO}, v6""")
    for i in range(32): A(f"  v_mov_b32 v{QA+i}, 0")
    for i in range(4):
        for k in (1, 2, 3): A(f"  v_mov_b32 v{FB[0]+4*i+k}, 0")
    ONE = FB[1]
    A(f"""  v_cmp_gt_u32 vcc, 32, v{vLane}
  v_mov_b32 v5, 0x3f80
  v_mov_b32 v{ONE+1}, 0
  v_cndmask_b32 v{ONE}, 0, v5, vcc
  v_mov_b32 v{ONE+2}, 0
  v_mov_b32 v{ONE+3}, 0
  s_waitcnt vmcnt(0)
  s_nop 0""")
    for d, i in ((H0A, 0), (H0B, 0), (H1A, 1), (H1B, 1), (H2A, 2), (H2B, 2), (H6A, 3)):
        mfma(d, FB[0] + 4 * i, ONE, "0")
    def c_reads(b, ks):
        f = FB[b]
        R = [f"  ds_read_b128 {vr(f,4)}, v{aXA+ks}"]
        R += [f"  ds_read_b64_tr_b16 {vr(f+8+2*j,2)}, v{aWq} offset:{ks*2048+j*512}" for j in range(2)]
        R += [f"  ds_read_b128 {vr(f+4,4)}, v{aXB+ks}"]
        for t in range(3):
            R += [f"  ds_read_b64_tr_b16 {vr(f+12+4*t+2*j,2)}, v{aW} offset:{ks*7168+j*1792+t*64}" for j in range(2)]
        R += [f"  ds_read_b64_tr_b16 {vr(f+24+2*j,2)}, v{aW6} offset:{ks*7168+j*1792}" for j in range(2)]
        return R
    A(f"  s_mov_b32 s{sCnt}, 16\n  s_mov_b32 s{sSlot}, 0")
    stamp(1)
    A("  s_barrier")
    stamp(2)
    for r in c_reads(0, 0): A(r)
    A("  s_waitcnt lgkmcnt(0)")
    A(".p2align 6\nL_c_loop:")
    for ks in range(4):
        b = ks & 1; f = FB[b]
        xa, xb, wq, w0, w1, w2, w6 = f, f + 4, f + 8, f + 12, f + 16, f + 20, f + 24
        M = [(QA, wq, xa), (QB, wq, xb), (H0A, w0, xa), (H0B, w0, xb), (H1A, w1, xa), (H1B, w1, xb), (H2A, w2, xa), (H2B, w2, xb), (H6A, w6, xa)]
        R = c_reads(b ^ 1, (ks + 1) & 3)
        gaps = [[] for _ in range(9)]
        cnt = [3, 3, 2, 2, 2, 0, 0, 0, 0]
        for g in range(9):
            for _ in range(cnt[g]): gaps[g].append(R.pop(0))
        add = lambda r: f"  v_add_u32 v{r}, s{sDelta}, v{r}"
        if ks == 0:
            gaps[2] += [f"  s_add_u32 s{sSlot}, s{sSlot}, 1", f"  s_cmp_eq_u32 s{sSlot}, 3"]
            gaps[3] += [f"  s_cselect_b32 s{sSlot}, 0, s{sSlot}", f"  s_cselect_b32 s{sDelta}, {(-2*SLOT) & 0xffffffff}, {SLOT}"[:0] + f"  s_cselect_b32 s{sDelta}, s{sU6}, s{sT2}"]
            gaps[5] += [add(aXA + 1), add(aXB + 1)]
            gaps[6] += [add(aXA), add(aXB)]
        if ks == 1: gaps[5] += [add(aXA + 2), add(aXB + 2)]
        if ks == 2:
            gaps[5] += [add(aXA + 3), add(aXB + 3)]
            gaps[6] += [add(aWq), add(aW), add(aW6)]
        if ks == 3:
            gaps[0] = ["  s_barrier"] + gaps[0]
            gaps[6] += [f"  s_sub_u32 s{sCnt}, s{sCnt}, 1", f"  s_cmp_lg_u32 s{sCnt}, 0"]
        gaps[8] += ["  s_waitcnt lgkmcnt(0)"]
        for g in range(9):
            mfma(*M[g])
            for x in gaps[g]: A(x)
    A("  s_cbranch_scc1 L_c_loop")
    i0 = L.index(f"  s_mov_b32 s{sCnt}, 16\n  s_mov_b32 s{sSlot}, 0")
    L[i0] += f"\n  s_mov_b32 s{sU6}, {(-2*SLOT) & 0xffffffff}\n  s_mov_b32 s{sT2}, {SLOT}"
    stamp(3)
    sHA, sHB, sH6 = sU4, sU5, sU6
    A(f"""  s_lshl_b32 s{sT0}, s{sRb1}, 2
  s_add_u32 s{sT1}, s{sT0}, s{sTA}
  s_add_u32 s{sT0}, s{sT0}, s{sTB}
  s_mul_i32 s{sT1}, s{sT1}, 224
  s_mul_i32 s{sT0}, s{sT0}, 224
  s_mul_i32 s{sT2}, s{sCb1}, 14
  s_add_u32 s{sT1}, s{sT1}, s{sT2}
  s_add_u32 s{sT0}, s{sT0}, s{sT2}
  s_add_u32 s{sH6}, s{sT1}, 12
  s_mul_i32 s{sT2}, s{sCh}, 6
  s_add_u32 s{sHA}, s{sT1}, s{sT2}
  s_add_u32 s{sHB}, s{sT0}, s{sT2}
  s_lshl_b32 s{sHA}, s{sHA}, 10
  s_lshl_b32 s{sHB}, s{sHB}, 10
  s_lshl_b32 s{sH6}, s{sH6}, 10
  v_lshlrev_b32 v10, 4, v{vLane}
  v_add_u32 v11, 4096, v10""")
    assert HF == 0
    k = 0
    for d, so, t in ((H0A, sHA, 0), (H0B, sHB, 0), (H1A, sHA, 1), (H1B, sHB, 1), (H2A, sHA, 2), (H2B, sHB, 2), (H6A, sH6, 0)):
        for j in range(2):
            pk = FB[0] + 4 * (k % 8); k += 1
            for i in range(8): A(f"  v_mul_f32 v{d+8*j+i}, v{d+8*j+i}, abs(v{d+8*j+i})")
            for i in range(4): A(f"  v_cvt_pk_bf16_f32 v{pk+i}, v{d+8*j+2*i}, v{d+8*j+2*i+1}")
            for i in range(4): A(f"  v_pk_max_i16 v{pk+i}, v{pk+i}, 0")
            off = t * 2048 + j * 1024
            A(f"  buffer_store_dwordx4 {vr(pk,4)}, v{10 if off < 4096 else 11}, {sr(rWs,4)}, s{so} offen offset:{off & 4095} sc1")
    Q = 228
    A(f"  s_mov_b32 s{sT0}, {f2u(32 ** -0.5 * math.log2(math.e))}")
    for i in range(32): A(f"  v_mul_f32 v{QA+i}, s{sT0}, v{QA+i}")
    for i in range(16): A(f"  v_cvt_pk_bf16_f32 v{Q+i}, v{QA+2*i}, v{QA+2*i+1}")
    O = [16, 32]; LS = [48, 52]; ONES = 56; IDX = 60; aKV = 61
    S = [64, 80]; PP = [96, 104]; KF = [112, 120]; VF = [128, 136]; NM = [144, 160]
    for i in range(40): A(f"  v_mov_b32 v{O[0]+i}, 0")
    for i in range(8): A(f"  v_mov_b32 v{PP[1]+i}, 0\n  v_mov_b32 v{VF[1]+i}, 0")
    A(f"""  v_and_b32 v2, 6, v{vLane}
  v_mov_b32 v3, 0x3f803f80
  v_cmp_eq_u32 vcc, 0, v2
  v_cmp_eq_u32 s[{sT0}:{sT0+1}], 4, v2
  v_and_b32 v4, 1, v{vLane}
  v_cndmask_b32 v{ONES}, 0, v3, vcc
  v_cndmask_b32 v{ONES+1}, 0, v3, vcc
  v_cndmask_b32 v{ONES+2}, 0, v3, s[{sT0}:{sT0+1}]
  v_cndmask_b32 v{ONES+3}, 0, v3, s[{sT0}:{sT0+1}]
  v_mul_u32_u24 v4, 0xaaaa, v4
  v_add_u32 v{IDX}, 0x4444, v4
  v_mov_b32 v{aKV}, v10""")
    sFh = sU6; sP = sCnt; sRing = sU5; sDl = sU4
    A(f"""  s_lshl_b32 s{sT0}, s{sRb1}, 8
  s_lshl_b32 s{sT1}, s{sCb1}, 4
  s_add_u32 s{sT0}, s{sT0}, s{sT1}
  s_lshl_b32 s{sT1}, s{sW}, 2
  s_add_u32 s{sFh}, s{sT0}, s{sT1}
  s_mov_b32 s{sP}, 0
  s_mov_b32 s{sRing}, 0""")
    stamp(4)
    A("  s_barrier                                ; Z")
    A("  s_barrier                                ; AP(0)")
    stamp(5)
    def rdK(b, kt): return [f"  ds_read_b128 {vr(KF[b]+4*j,4)}, v{aKV} offset:{kt*4096+j*1024}" for j in range(2)]
    def rdV(b, kt): return [f"  ds_read_b128 {vr(VF[b]+4*j,4)}, v{aKV} offset:{kt*4096+2048+j*1024}" for j in range(2)]
    for r in rdK(0, 0) + rdV(0, 0): A(r)
    A("  s_waitcnt lgkmcnt(2)")
    mfma(S[0], KF[0], Q, "0"); mfma(S[0], KF[0] + 4, Q + 4)
    A("  s_nop 10")
    def smf(q, p): A(f"  v_smfmac_f32_16x16x64_bf16 {vr(LS[q],4)}, {vr(ONES,4)}, {vr(PP[p],8)}, v{IDX}")
    A(".p2align 6\nL_a_loop:")
    for kt in range(4):
        for qt in range(2):
            s = S[qt]; p = PP[qt]; sn = S[qt ^ 1]
            kb = (kt + qt) & 1
            qn = Q + 8 * (qt ^ 1)
            vb = (kt + qt + 1) & 1
            op = O[qt ^ 1]; pp = PP[qt ^ 1]
            e = [0]; c = [0]
            def E(n):
                for _ in range(n): A(f"  v_exp_f32 v{s+e[0]}, v{s+e[0]}"); e[0] += 1
            def C(n):
                for _ in range(n): A(f"  v_cvt_pk_bf16_f32 v{p+c[0]}, v{s+2*c[0]}, v{s+2*c[0]+1}"); c[0] += 1
            R = rdK((kt + 1) & 1, (kt + 1) & 3) if qt == 0 else rdV((kt + 1) & 1, (kt + 1) & 3)
            mfma(sn, KF[kb], qn, "0")
            if kt == 3 and qt == 0:
                A("  s_waitcnt lgkmcnt(0)\n  s_barrier")
                A(f"  v_add_u32 v{aKV}, s{sDl}, v{aKV}")
            A(R[0])
            E(3); C(1); E(1)
            mfma(sn, KF[kb] + 4, qn + 4)
            A(R[1])
            E(3); C(1); E(1); C(1)
            mfma(op, VF[vb], pp)
            if kt == 0 and qt == 0: A(f"  s_add_u32 s{sRing}, s{sRing}, 1")
            if kt == 0 and qt == 1: A(f"  s_cmp_eq_u32 s{sRing}, 3")
            if kt == 1 and qt == 0: A(f"  s_cselect_b32 s{sDl}, {(-32768) & 0xffffffff}, s{sT2}")
            if kt == 1 and qt == 1: A(f"  s_cselect_b32 s{sRing}, 0, s{sRing}")
            if kt == 2 and qt == 0: A(f"  s_cmp_eq_u32 s{sP}, {P['HP']}")
            if kt == 3 and qt == 0: A(f"  s_add_u32 s{sP}, s{sP}, 1")
            if kt == 3 and qt == 1: A(f"  s_cmp_lg_u32 s{sP}, 16")
            E(3); C(1); E(1); C(1)
            mfma(op, VF[vb] + 4, pp + 4)
            if kt == 2 and qt == 0: A("  s_cbranch_scc1 L_a_hflag\nL_a_hback:")
            E(3)
            smf(qt ^ 1, qt ^ 1)
            if not (kt == 2 and qt == 1): A("  s_waitcnt lgkmcnt(0)")
            E(1); C(3)
    A("  s_cbranch_scc1 L_a_loop")
    i0 = L.index(f"  s_barrier                                ; Z")
    L[i0] = f"  s_mov_b32 s{sT2}, 16384\n" + L[i0]
    A("  s_nop 0")
    mfma(O[1], VF[1], PP[1]); mfma(O[1], VF[1] + 4, PP[1] + 4); smf(1, 1)
    stamp(6)
    A("  s_nop 11")
    A("L_a_fin:")
    A(f"""  v_add_f32 v2, v{LS[0]}, v{LS[0]+1}
  v_add_f32 v3, v{LS[1]}, v{LS[1]+1}
  s_cmp_eq_u32 s{sP}, 16
  s_cbranch_scc0 L_a_norm
  v_min_f32 v4, v2, v3
  v_max_f32 v5, v2, v3
  v_add_f32 v6, v2, v3
  s_mov_b32 s{sT0}, {f2u(2.0 ** -30)}
  s_mov_b32 s{sT1}, {f2u(2.0 ** 30) if not P['FORCE_FB'] else f2u(2.0 ** -29)}
  v_cmp_le_f32 vcc, s{sT0}, v4
  v_cmp_ge_f32 s[{sT2}:{sT2+1}], s{sT1}, v5
  s_and_b64 vcc, vcc, s[{sT2}:{sT2+1}]
  v_cmp_o_f32 s[{sT2}:{sT2+1}], v6, v6
  s_and_b64 vcc, vcc, s[{sT2}:{sT2+1}]
  s_cmp_eq_u64 vcc, exec
  s_cbranch_scc0 L_a_slow
L_a_norm:
  v_rcp_f32 v2, v2
  v_rcp_f32 v3, v3
  s_lshl_b32 s{sT0}, s{sRb1}, 2
  s_add_u32 s{sT1}, s{sT0}, s{sTB}
  s_add_u32 s{sT0}, s{sT0}, s{sTA}
  s_lshl_b32 s{sT0}, s{sT0}, 16
  s_lshl_b32 s{sT1}, s{sT1}, 16
  s_lshl_b32 s{sT2}, s{sCb1}, 1
  s_add_u32 s{sT2}, s{sT2}, s{sCh}
  s_lshl_b32 s{sT2}, s{sT2}, 11
  s_add_u32 s{sT2}, s{sT2}, {OF}
  s_add_u32 s{sT0}, s{sT0}, s{sT2}
  s_add_u32 s{sT1}, s{sT1}, s{sT2}""")
    for q in range(2):
        for j in range(2):
            pk = S[0] + 8 * q + 4 * j
            for i in range(8): A(f"  v_mul_f32 v{O[q]+8*j+i}, v{2+q}, v{O[q]+8*j+i}")
            for i in range(4): A(f"  v_cvt_pk_bf16_f32 v{pk+i}, v{O[q]+8*j+2*i}, v{O[q]+8*j+2*i+1}")
            A(f"  buffer_store_dwordx4 {vr(pk,4)}, v10, {sr(rWs,4)}, s{sT0+q} offen offset:{j*1024} sc1")
    stamp(7)
    A("  s_barrier                                ; AP(17)")
    A(f"  s_add_u32 s{sT0}, s{sFh}, {FO}\n  s_waitcnt vmcnt(0)")
    flag_store(f"s{sT0}")
    stamp(8)
    dump_stamps()
    A("  s_endpgm")
    A(f"L_a_hflag:\n  s_add_u32 s{sT0}, s{sFh}, {FH}")
    stamp(9)
    A("  s_waitcnt vmcnt(0)")
    flag_store(f"s{sT0}")
    stamp(10)
    A("  s_branch L_a_hback")
    A("L_a_slow:")
    A(f"  s_mov_b32 s{sP}, 0\n  v_mov_b32 v2, 0xff800000\n  v_mov_b32 v3, 0xff800000\n  s_mov_b32 s{sT0}, {KVF}")
    A("L_s_loop1:")
    for j in range(2): A(f"  buffer_load_dwordx4 {vr(KF[0]+4*j,4)}, v10, {sr(rWs,4)}, s{sT0} offen offset:{j*1024} sc1")
    A("  s_waitcnt vmcnt(0)")
    for q in range(2):
        mfma(S[q], KF[0], Q + 8 * q, "0"); mfma(S[q], KF[0] + 4, Q + 8 * q + 4)
    A("  s_nop 11")
    for q in range(2):
        for i in range(8): A(f"  v_max3_f32 v{2+q}, v{S[q]+2*i}, v{S[q]+2*i+1}, v{2+q}")
    A(f"  s_add_u32 s{sT0}, s{sT0}, 4096\n  s_cmp_lg_u32 s{sT0}, {KVF + 64*4096}\n  s_cbranch_scc1 L_s_loop1")
    A("""  v_mov_b32 v4, v2
  v_mov_b32 v5, v3
  s_nop 1
  v_permlane32_swap_b32 v2, v4
  v_permlane32_swap_b32 v3, v5
  s_nop 1
  v_max_f32 v2, v2, v4
  v_max_f32 v3, v3, v5""")
    for q in range(2):
        for i in range(16): A(f"  v_sub_f32 v{NM[q]+i}, 0, v{2+q}")
    for i in range(40): A(f"  v_mov_b32 v{O[0]+i}, 0")
    A(f"  s_mov_b32 s{sT0}, {KVF}\nL_s_loop2:")
    for j in range(2):
        A(f"  buffer_load_dwordx4 {vr(KF[0]+4*j,4)}, v10, {sr(rWs,4)}, s{sT0} offen offset:{j*1024} sc1")
        A(f"  buffer_load_dwordx4 {vr(VF[0]+4*j,4)}, v10, {sr(rWs,4)}, s{sT0} offen offset:{2048+j*1024} sc1")
    A("  s_waitcnt vmcnt(0)")
    for q in range(2):
        mfma(S[q], KF[0], Q + 8 * q, vr(NM[q], 16)); mfma(S[q], KF[0] + 4, Q + 8 * q + 4)
    A("  s_nop 11")
    for q in range(2):
        for i in range(16): A(f"  v_exp_f32 v{S[q]+i}, v{S[q]+i}")
        for i in range(8): A(f"  v_cvt_pk_bf16_f32 v{PP[q]+i}, v{S[q]+2*i}, v{S[q]+2*i+1}")
    A("  s_nop 1")
    for q in range(2):
        mfma(O[q], VF[0], PP[q]); mfma(O[q], VF[0] + 4, PP[q] + 4); smf(q, q)
    A(f"  s_add_u32 s{sT0}, s{sT0}, 4096\n  s_cmp_lg_u32 s{sT0}, {KVF + 64*4096}\n  s_cbranch_scc1 L_s_loop2")
    A("  s_nop 11\n  s_branch L_a_fin")

    A(".p2align 6\nL_prole:")
    vX, vQ, vW1, vKV, vG, aX, aT = 16, 20, 22, 29, 30, 31, 32
    WK = [36, 40]; XF = 44; GFR = 48; D = [52, 56]; DG = 60
    sKb1, sOx, sOq, sOw, sLb, sXoff, sTok0 = sU0, sU1, sU2, sU3, sU4, sU5, sU6
    srd(rA, pX, 2048 * 1024 * 2)
    srd(rB, pWq, 1024 * 1024 * 2)
    srd(rC, pW1, 1024 * 3584 * 2)
    A(f"""  s_and_b32 s{sT0}, s{sCb1}, 1
  s_cmp_eq_u32 s{sT0}, 0
  s_cselect_b32 s{rD}, s{pWk}, s{pWv}
  s_cselect_b32 s{rD+1}, s{pWk+1}, s{pWv+1}
  s_mov_b32 s{rD+2}, 65536
  s_mov_b32 s{rD+3}, 0x20000""")
    srd(rE, pGate, 2048)
    A(f"  s_add_u32 s{sT0}, s{sRb1}, s{sCb1}\n  s_and_b32 s{sT0}, s{sT0}, 3")
    for j in range(4):
        t = sum(b << (4 * i) for i, b in enumerate(lead_seq(j)))
        if j == 0: A(f"  s_mov_b32 s{sTab}, {t & 0xffffffff}\n  s_mov_b32 s{sTab+1}, {t >> 32}")
        else: A(f"  s_cmp_eq_u32 s{sT0}, {j}\n  s_cselect_b32 s{sTab}, {t & 0xffffffff}, s{sTab}\n  s_cselect_b32 s{sTab+1}, {t >> 32}, s{sTab+1}")
    A(f"""  s_lshr_b32 s{sT0}, s{sCb1}, 2
  s_lshr_b32 s{sT1}, s{sRb1}, 3
  s_lshl_b32 s{sT1}, s{sT1}, 1
  s_add_u32 s{sXoff}, s{sT0}, s{sT1}
  s_lshl_b32 s{sXoff}, s{sXoff}, 2
  v_lshrrev_b32 v3, 3, v{vLane}            ; row8
  v_and_b32 v4, 7, v{vLane}                ; chunk
  s_lshl_b32 s{sT0}, s{sRb1}, 7
  s_lshl_b32 s{sT1}, s{sW}, 5
  s_add_u32 s{sT0}, s{sT0}, s{sT1}
  v_add_u32 v5, s{sT0}, v3
  v_lshlrev_b32 v5, 11, v5
  v_lshrrev_b32 v6, 1, v3
  v_xor_b32 v7, v4, v6
  v_lshl_add_u32 v{vX}, v7, 4, v5
  v_xor_b32 v{vX+1}, 64, v{vX}
  v_add_u32 v{vX+1}, 0x4000, v{vX+1}
  v_add_u32 v{vX+2}, 0x8000, v{vX}
  v_add_u32 v{vX+3}, 0x8000, v{vX+1}
  s_lshl_b32 s{sT0}, s{sW}, 4
  v_add_u32 v5, s{sT0}, v3
  v_lshlrev_b32 v5, 11, v5
  v_and_b32 v6, 1, v6
  v_lshlrev_b32 v6, 2, v6
  v_xor_b32 v7, v4, v6
  v_lshl_add_u32 v9, v7, 4, v5
  s_lshl_b32 s{sT1}, s{sCb1}, 7
  v_add_u32 v{vQ}, s{sT1}, v9
  v_add_u32 v{vQ+1}, 0x4000, v{vQ}
  s_mul_i32 s{sT1}, s{sCb1}, 448
  s_mul_i32 s{sT0}, s{sT0}, 7168
  s_add_u32 s{sT1}, s{sT1}, s{sT0}""")
    for i in range(7):
        A(f"""  v_add_u32 v5, {i*64}, v{vLane}
  v_mul_u32_u24 v6, 2341, v5
  v_lshrrev_b32 v6, 16, v6
  v_mul_u32_u24 v6, {7168 - 448}, v6
  v_lshl_add_u32 v6, v5, 4, v6
  v_add_u32 v{vW1+i}, s{sT1}, v6""")
    A(f"""  v_lshlrev_b32 v10, 4, v{vLane}
  s_lshl_b32 s{sT0}, s{sW}, 10
  v_add_u32 v{vKV}, s{sT0}, v10
  v_lshrrev_b32 v5, 4, v{vLane}            ; kg
  s_lshl_b32 s{sT1}, s{sW}, 5
  v_lshl_add_u32 v{vG}, v5, 3, s{sT1}""")
    def next_kb():
        A(f"""  s_add_u32 s{sT0}, s{sTab}, s{sXoff}
  s_and_b32 s{sT0}, s{sT0}, 15
  s_lshr_b64 s[{sTab}:{sTab+1}], s[{sTab}:{sTab+1}], 4
  s_lshl_b32 s{sOx}, s{sT0}, 7
  s_lshl_b32 s{sOq}, s{sT0}, 17
  s_mul_i32 s{sOw}, s{sT0}, {64*7168}""")
    sBx, sBq, sBw = 26, 27, sT3
    def slot_bases():
        A(f"""  s_lshl_b32 s{sBx}, s{sW}, 12
  s_add_u32 s{sBx}, s{sBx}, s{sLb}
  s_lshl_b32 s{sBq}, s{sW}, 11
  s_add_u32 s{sBq}, s{sBq}, s{sLb}
  s_mul_i32 s{sBw}, s{sW}, 7168
  s_add_u32 s{sBw}, s{sBw}, s{sLb}""")
    def stage_ops():
        o = []
        for i in range(4): o.append(f"  s_add_u32 m0, s{sBx}, {XO+i*1024}\n  s_nop 0\n  buffer_load_dwordx4 v{vX+i}, {sr(rA,4)}, s{sOx} offen lds")
        for i in range(2): o.append(f"  s_add_u32 m0, s{sBq}, {QO+i*1024}\n  s_nop 0\n  buffer_load_dwordx4 v{vQ+i}, {sr(rB,4)}, s{sOq} offen lds")
        for i in range(7): o.append(f"  s_add_u32 m0, s{sBw}, {WO1+i*1024}\n  s_nop 0\n  buffer_load_dwordx4 v{vW1+i}, {sr(rC,4)}, s{sOw} offen lds")
        return o
    def adv_slot():
        A(f"  s_add_u32 s{sLb}, s{sLb}, {SLOT}\n  s_cmp_eq_u32 s{sLb}, {3*SLOT}\n  s_cselect_b32 s{sLb}, 0, s{sLb}")
    def kv_loads(par):
        A(f"""  s_lshl_b32 s{sT1}, s{sW}, 10
  s_add_u32 m0, s{sT1}, {SPARE}
  s_lshl_b32 s{sT0}, s{sOx}, 5
  buffer_load_dwordx4 v{vKV}, {sr(rD,4)}, s{sT0} offen lds
  buffer_load_dwordx2 {vr(GFR+2*par,2)}, v{vG}, {sr(rE,4)}, s{sOx} offen""")
    A(f"  s_mov_b32 s{sLb}, 0")
    next_kb(); slot_bases()
    for o in stage_ops(): A(o)
    kv_loads(0)
    next_kb(); adv_slot(); slot_bases()
    ops = stage_ops()
    for o in ops[:7]: A(o)
    A(f"""  s_lshr_b32 s{sTok0}, s{sCb1}, 1
  s_lshl_b32 s{sTok0}, s{sTok0}, 4
  v_and_b32 v2, 15, v{vLane}
  v_lshrrev_b32 v5, 4, v{vLane}            ; kg
  v_lshrrev_b32 v6, 1, v2
  v_lshrrev_b32 v7, 1, v5
  s_lshl_b32 s{sT0}, s{sW}, 1
  v_add_u32 v7, s{sT0}, v7
  v_xor_b32 v7, v7, v6
  v_lshlrev_b32 v7, 4, v7
  v_and_b32 v8, 1, v5
  v_lshl_add_u32 v7, v8, 3, v7
  v_add_u32 v8, s{sTok0}, v2
  v_lshl_add_u32 v{aX}, v8, 7, v7
  v_lshrrev_b32 v6, 2, v{vLane}            ; 4g + r
  v_and_b32 v7, 3, v{vLane}
  v_lshlrev_b32 v7, 3, v7
  v_lshl_add_u32 v7, v6, 6, v7
  s_lshl_b32 s{sT0}, s{sW}, 10
  s_add_u32 s{sT0}, s{sT0}, {SPARE}
  v_add_u32 v{aT}, s{sT0}, v7""")
    for i in range(12): A(f"  v_mov_b32 v{D[0]+i}, 0")
    sXs = sKb1
    A(f"  s_mov_b32 s{sXs}, 0\n  s_waitcnt vmcnt(7)")
    stamp(1)
    A("  s_barrier                                ; BAR(0)")
    for o in ops[7:]: A(o)
    def kv_reads(par):
        A(f"  v_add_u32 v2, s{sXs}, v{aX}")
        for nh in range(2): A(f"  ds_read_b64_tr_b16 {vr(WK[nh]+2*par,2)}, v{aT} offset:{nh*32}")
        A(f"  ds_read_b64 {vr(XF+2*par,2)}, v2")
        A(f"  s_add_u32 s{sXs}, s{sXs}, {SLOT}\n  s_cmp_eq_u32 s{sXs}, {3*SLOT}\n  s_cselect_b32 s{sXs}, 0, s{sXs}")
        A("  s_waitcnt lgkmcnt(0)")
    def kv_mfma():
        lv, le = lab("kvv"), lab("kve")
        m16 = lambda d, a, b: A(f"  v_mfma_f32_16x16x32_bf16 {vr(d,4)}, {vr(a,4)}, {vr(b,4)}, {vr(d,4)}")
        A(f"  s_bitcmp1_b32 s{sCb1}, 0\n  s_cbranch_scc1 {lv}")
        m16(D[0], WK[0], XF); m16(D[1], WK[1], XF); m16(DG, GFR, XF)
        A(f"  s_branch {le}\n{lv}:")
        m16(D[0], XF, WK[0]); m16(D[1], XF, WK[1])
        A(f"{le}:")
    A(f"  s_mov_b32 s{sCnt}, 7\n.p2align 6\nL_p_loop:")
    for par in range(2):
        kv_reads(par)
        if par: kv_mfma()
        kv_loads(par ^ 1)
        next_kb(); adv_slot(); slot_bases()
        for o in stage_ops(): A(o)
        A("  s_waitcnt vmcnt(13)\n  s_barrier")
    A(f"  s_sub_u32 s{sCnt}, s{sCnt}, 1\n  s_cmp_lg_u32 s{sCnt}, 0\n  s_cbranch_scc1 L_p_loop")
    stamp(2)
    kv_reads(0); kv_loads(1)
    A("  s_waitcnt vmcnt(0)\n  s_barrier                                ; BAR(15)")
    srd(rA, pW2, 3584 * 1024 * 2)
    srd(rB, pWo, 1024 * 1024 * 2)
    if P["TOUCH"]:
        lt = lab("notouch")
        A(f"""  s_cmp_eq_u32 s{sW}, 0
  s_cbranch_scc1 {lt}
  s_and_b32 s{sT0}, s2, 7
  s_lshl_b32 s{sT0}, s{sT0}, 5
  s_lshr_b32 s{sT1}, s2, 3
  s_add_u32 s{sT0}, s{sT0}, s{sT1}          ; xcd*32+idx
  s_mul_i32 s{sT1}, s{sT0}, 28672
  s_sub_u32 s{sT2}, s{sW}, 1
  s_mul_i32 s{sT2}, s{sT2}, 10240
  s_add_u32 s{sT1}, s{sT1}, s{sT2}
  v_lshlrev_b32 v3, 7, v{vLane}
  buffer_load_dword v33, v3, {sr(rA,4)}, s{sT1} offen
  s_cmp_eq_u32 s{sW}, 3
  s_cbranch_scc1 {lt}_o
  s_add_u32 s{sT1}, s{sT1}, 8192
  s_mov_b64 exec, 0xffff
  buffer_load_dword v34, v3, {sr(rA,4)}, s{sT1} offen
  s_mov_b64 exec, -1
  s_branch {lt}
{lt}_o:
  s_lshl_b32 s{sT1}, s{sT0}, 13
  buffer_load_dword v34, v3, {sr(rB,4)}, s{sT1} offen
{lt}:""")
    kv_reads(1); kv_mfma()
    A(f"""  s_mul_i32 s{sT0}, s{sW}, 3072
  s_add_u32 s{sT0}, s{sT0}, {SCR}
  v_add_u32 v2, s{sT0}, v10
  s_nop 5""")
    for i in range(3): A(f"  ds_write_b128 v2, {vr(D[0]+4*i,4)} offset:{i*1024}")
    A("  s_waitcnt lgkmcnt(0)\n  s_barrier                                ; BAR(16)")
    stamp(3)
    l1, lz = lab("p1"), lab("pz")
    A(f"  s_cmp_lg_u32 s{sW}, 0\n  s_cbranch_scc1 {l1}")
    for w in range(1, 4):
        for i in range(3): A(f"  ds_read_b128 {vr(64+12*(w-1)+4*i,4)}, v2 offset:{w*3072+i*1024}")
    A(f"""  v_and_b32 v3, 15, v{vLane}
  v_bfe_u32 v4, v{vLane}, 4, 1
  v_lshl_add_u32 v4, v4, 5, v3
  v_lshrrev_b32 v5, 5, v{vLane}
  v_lshlrev_b32 v5, 3, v5
  v_lshl_add_u32 v4, v4, 4, v5
  s_lshl_b32 s{sT0}, s{sRb1}, 2
  s_lshr_b32 s{sT1}, s{sTok0}, 5
  s_add_u32 s{sT0}, s{sT0}, s{sT1}
  s_lshl_b32 s{sT0}, s{sT0}, 12
  s_add_u32 s{sT0}, s{sT0}, {KVF}
  s_and_b32 s{sT1}, s{sTok0}, 16
  s_lshl_b32 s{sT2}, s{sT1}, 4              ; K: (tok0&16)*16
  s_lshl_b32 s{sT1}, s{sT1}, 6
  s_add_u32 s{sT1}, s{sT1}, 2048            ; V: 2048 + j*1024
  s_bitcmp1_b32 s{sCb1}, 0
  s_cselect_b32 s{sT1}, s{sT1}, s{sT2}
  s_cselect_b32 s{sT2}, 256, s{pX}
  s_cselect_b32 s{sT3}, 0, 1
  s_add_u32 s{sT0}, s{sT0}, s{sT1}
  s_cmp_eq_u32 s{sT3}, 1
  s_cselect_b32 s{sT2}, 1024, s{sT2}
  s_add_u32 s{sT1}, s{sT0}, s{sT2}
  s_waitcnt lgkmcnt(0)""")
    for w in range(3):
        for i in range(9): A(f"  v_add_f32 v{D[0]+i}, v{D[0]+i}, v{64+12*w+i}")
    for i in range(4): A(f"  v_cvt_pk_bf16_f32 v{64+i}, v{D[0]+2*i}, v{D[0]+2*i+1}")
    A(f"""  buffer_store_dwordx2 v[64:65], v4, {sr(rWs,4)}, s{sT0} offen sc1
  buffer_store_dwordx2 v[66:67], v4, {sr(rWs,4)}, s{sT1} offen sc1
  s_cmp_eq_u32 s{sT3}, 1
  s_cbranch_scc0 {l1}_ng
  v_mul_f32 v5, {f2u(-math.log2(math.e))}, v{DG}
  v_exp_f32 v5, v5
  s_lshl_b32 s{sT0}, s{sRb1}, 7
  v_add_f32 v5, 1.0, v5
  v_rcp_f32 v5, v5
  s_add_u32 s{sT0}, s{sT0}, s{sTok0}
  s_lshl_b32 s{sT0}, s{sT0}, 2
  s_add_u32 s{sT0}, s{sT0}, {GF}
  v_lshlrev_b32 v3, 2, v3
  s_mov_b64 exec, 0xffff
  buffer_store_dword v5, v3, {sr(rWs,4)}, s{sT0} offen sc1
  s_mov_b64 exec, -1
{l1}_ng:
  s_lshl_b32 s{sT0}, s{sRb1}, 7
  s_lshl_b32 s{sT1}, s{sCb1}, 2
  s_add_u32 s{sT0}, s{sT0}, s{sT1}
  s_add_u32 s{sT0}, s{sT0}, {FKV}
  s_waitcnt vmcnt(0)""")
    flag_store(f"s{sT0}")
    A(f"  s_branch {lz}\n{l1}:\n  s_cmp_lg_u32 s{sW}, 1\n  s_cbranch_scc1 {lz}")
    srd(rC, pDbg, 256)
    A(f"  v_lshlrev_b32 v3, 2, v{vLane}")
    poll(3, rC, "0", 1, "0x01010101")
    A(f"""  v_lshrrev_b32 v3, 2, v{vLane}
  v_and_b32 v8, 3, v{vLane}
  v_lshlrev_b32 v8, 4, v8
  v_lshl_add_u32 v3, v3, 7, v8
  s_mov_b32 s{sT0}, {FKV}""")
    poll(3, rWs, f"s{sT0}", 4, "1")
    A(f"{lz}:")
    GA = 64; HH = 128; WF = 160; aWG = 176; vXs, vYs, vWo = 180, 181, 183; vH = 10; AA = 184; PR = 216
    sXsrc, sXstep, sXlds, sYsrc, sYstep, sYlds, sHoff = sU0, sU1, sU2, sU3, sU4, sU5, sU6
    sQ = sCnt; sHbase = 26; sRot = 27; sWl = 10; sChunk = 11
    rX, rY = rC, rD
    A(f"""  s_lshl_b32 s{sWl}, s{sW}, 10
  v_add_u32 v{vYs}, s{sWl}, v10
  v_add_u32 v{vYs}, {KVF}, v{vYs}""")
    srd(rY, pWs, WS_SIZE)
    A(f"""  s_mov_b32 s{sChunk}, s{sRb1}
  s_mov_b32 s{sYstep}, 4096
  s_mov_b32 s{sYlds}, s{sWl}""")
    def y_begin():
        A(f"  s_lshl_b32 s{sYsrc}, s{sChunk}, 14\n  s_add_u32 s{sChunk}, s{sChunk}, 1\n  s_and_b32 s{sChunk}, s{sChunk}, 15")
    def y_op(i):
        return f"  s_add_u32 m0, s{sYlds}, {KVRING + i*4096}\n  s_nop 0\n  buffer_load_dwordx4 v{vYs}, {sr(rY,4)}, s{sYsrc} offen sc1 lds\n  s_add_u32 s{sYsrc}, s{sYsrc}, s{sYstep}"
    def y_end():
        A(f"  s_add_u32 s{sYlds}, s{sYlds}, 16384\n  s_cmp_ge_u32 s{sYlds}, 49152\n  s_cselect_b32 s{sYlds}, s{sWl}, s{sYlds}")
    stamp(4)
    A("  s_barrier                                ; Z")
    stamp(5)
    for c in range(2):
        y_begin()
        for i in range(4): A(y_op(i))
        y_end()
    srd(rX, pW2, 3584 * 1024 * 2)
    srd(rE, pB2, 2048)
    A(f"""  v_and_b32 v2, 31, v{vLane}
  v_lshlrev_b32 v2, 1, v2
  s_lshl_b32 s{sT0}, s{sCbb}, 8
  s_lshl_b32 s{sT1}, s{sKh}, 7
  s_add_u32 s{sT1}, s{sT1}, s{sT0}          ; n0*2
  buffer_load_ushort v{WF}, v2, {sr(rE,4)}, s{sT1} offen
  buffer_load_ushort v{WF+4}, v2, {sr(rE,4)}, s{sT1} offen offset:64
  v_lshrrev_b32 v3, 4, v{vLane}
  v_and_b32 v4, 15, v{vLane}
  v_lshlrev_b32 v5, 2, v3
  v_xor_b32 v4, v4, v5
  s_lshl_b32 s{sT2}, s{sW}, 2
  v_add_u32 v3, s{sT2}, v3
  v_lshlrev_b32 v3, 11, v3
  v_lshl_add_u32 v3, v4, 4, v3
  s_mul_i32 s{sT2}, s{sKh}, {1792*2048}
  s_add_u32 s{sT2}, s{sT2}, s{sT0}
  v_add_u32 v{vXs}, s{sT2}, v3
  s_lshl_b32 s{sT2}, s{sW}, 14
  s_sub_u32 s{sT1}, s{sT1}, s{sT2}
  v_add_u32 v{vWo}, s{sT1}, v9
  v_bfe_u32 v3, v{vLane}, 2, 2             ; r
  v_lshrrev_b32 v4, 5, v{vLane}            ; h
  v_lshl_add_u32 v4, v4, 2, v3             ; 4h + r
  v_and_b32 v5, 3, v{vLane}
  v_lshlrev_b32 v5, 3, v5
  v_bfe_u32 v6, v{vLane}, 4, 1
  v_lshl_add_u32 v5, v6, 5, v5             ; nhalf*32 + c*8
  v_lshl_add_u32 v6, v4, 8, v5
  s_lshl_b32 s{sT2}, s{sKh}, 1
  v_xor_b32 v7, s{sT2}, v3
  v_lshl_add_u32 v6, v7, 6, v6
  v_add_u32 v6, {WRING}, v6
  v_lshrrev_b32 v3, 1, v3
  v_lshl_add_u32 v12, v4, 7, v5
  v_lshl_add_u32 v12, v3, 6, v12
  v_xor_b32 v13, 64, v12""")
    for ct in range(4): A(f"  v_xor_b32 v{aWG+ct}, {ct<<6}, v6")
    A(f"""  s_and_b32 s{sRot}, s2, 3
  s_lshl_b32 s{sRot}, s{sRot}, 2
  s_lshl_b32 s{sHbase}, s{sRb2}, 2
  s_add_u32 s{sHbase}, s{sHbase}, s{sW}
  s_mul_i32 s{sHbase}, s{sHbase}, 224
  s_mul_i32 s{sT0}, s{sKh}, 112
  s_add_u32 s{sHbase}, s{sHbase}, s{sT0}
  s_lshl_b32 s{sHbase}, s{sHbase}, 10
  s_mov_b32 s{sXstep}, 32768
  s_add_u32 s{sXlds}, s{sWl}, {WRING}
  v_add_u32 v11, 4096, v10""")
    for i in range(32): A(f"  v_mov_b32 v{GA+32+i}, 0\n  v_mov_b32 v{AA+i}, 0")
    for i in (1, 2, 3, 5, 6, 7, 9, 10, 11): A(f"  v_mov_b32 v{WF+i}, 0")
    A(f"""  v_cmp_gt_u32 vcc, 32, v{vLane}
  v_mov_b32 v5, 0x3f80
  s_nop 0
  v_cndmask_b32 v{WF+8}, 0, v5, vcc
  s_waitcnt vmcnt(6)
  s_barrier                                ; AP(0)""")
    def x_begin(q):
        if q is None: A(f"  s_add_u32 s{sT0}, s{sQ}, s{sRot}\n  s_add_u32 s{sT0}, s{sT0}, 3")
        else: A(f"  s_add_u32 s{sT0}, s{sRot}, {q}")
        A(f"  s_and_b32 s{sT0}, s{sT0}, 15\n  s_mul_i32 s{sXsrc}, s{sT0}, {7*32768}")
    def x_op(i):
        return f"  s_add_u32 m0, s{sXlds}, {i*4096}\n  s_nop 0\n  buffer_load_dwordx4 v{vXs}, {sr(rX,4)}, s{sXsrc} offen lds\n  s_add_u32 s{sXsrc}, s{sXsrc}, s{sXstep}"
    def x_end():
        A(f"  s_add_u32 s{sXlds}, s{sXlds}, {GRP}\n  s_add_u32 s{sT0}, s{sWl}, {WRING}\n  s_cmp_ge_u32 s{sXlds}, {WRING+4*GRP}\n  s_cselect_b32 s{sXlds}, s{sT0}, s{sXlds}")
    def h_op(i):
        return f"  buffer_load_dwordx4 {vr(HH+4*i,4)}, v{10 if i < 4 else 11}, {sr(rWs,4)}, s{sHoff} offen offset:{(i&3)*1024} sc1"
    PS = P["PSTART"]
    xg = 0
    for p in range(PS):
        y_begin()
        for i in range(4): A(y_op(i))
        y_end()
        ng = (3 - xg + (PS - p) - 1) // (PS - p)
        for _ in range(ng):
            x_begin(xg); xg += 1
            for i in range(7): A(x_op(i))
            x_end()
        if p == 0:
            A(f"  s_waitcnt vmcnt({4+7*ng})")
            mfma(GA, WF, WF + 8, "0"); mfma(GA + 16, WF + 4, WF + 8, "0")
        if p == PS - 1:
            A(f"""  v_and_b32 v3, 31, v{vLane}
  v_lshlrev_b32 v3, 2, v3
  s_lshl_b32 s{sT0}, s{sRb2}, 8
  s_lshl_b32 s{sT1}, s{sKh}, 7
  s_add_u32 s{sT0}, s{sT0}, s{sT1}
  s_add_u32 s{sT0}, s{sT0}, {FH}""")
            stamp(6)
            poll(3, rWs, f"s{sT0}", 1, "1")
            stamp(7)
            A(f"  s_mul_i32 s{sHoff}, s{sRot}, 7168\n  s_add_u32 s{sHoff}, s{sHoff}, s{sHbase}")
            for i in range(7): A(h_op(i))
        else:
            A(f"  s_waitcnt vmcnt({4+7*ng})")
        A(f"  s_barrier                                ; AP({p+1})")
    assert xg == 3
    def w_reads(ct, i):
        return [f"  ds_read_b64_tr_b16 {vr(WF+4*ct+2*j,2)}, v{aWG+ct} offset:{i*4096+j*2048}" for j in range(2)]
    for ct in range(4):
        for r in w_reads(ct, 0): A(r)
    sRd = 25
    sGr = 24
    A(f"  s_mov_b32 s{sQ}, 0\n  s_mov_b32 s{sGr}, 0\n  s_waitcnt vmcnt(0)")
    A(".p2align 6\nL_g_loop:")
    lx, lx2, ly, ly2 = lab("gx"), lab("gx2"), lab("gy"), lab("gy2")
    A(f"  s_cmp_ge_u32 s{sQ}, 13\n  s_cbranch_scc1 {lx}")
    x_begin(None)
    A(f"{lx2}:\n  s_cmp_ge_u32 s{sQ}, {14-PS}\n  s_cbranch_scc1 {ly}")
    y_begin()
    A(f"{ly2}:")
    A(f"""  s_add_u32 s{sT0}, s{sQ}, s{sRot}
  s_add_u32 s{sT0}, s{sT0}, 1
  s_and_b32 s{sT0}, s{sT0}, 15
  s_mul_i32 s{sHoff}, s{sT0}, 7168
  s_add_u32 s{sHoff}, s{sHoff}, s{sHbase}
  s_cmp_eq_u32 s{sQ}, 15
  s_cselect_b32 s{sHoff}, 0x7f000000, s{sHoff}
  s_add_u32 s{sGr}, s{sGr}, 1
  s_and_b32 s{sGr}, s{sGr}, 3
  s_mov_b32 s{sRd}, {GRP}
  s_cselect_b32 s{sRd}, s{sRd}, {(-3*GRP) & 0xffffffff}""")
    for i in range(7):
        for ct in range(4):
            A(f"  s_waitcnt {'vmcnt(12) ' if ct == 0 else ''}lgkmcnt(6)")
            mfma(GA + 16 * ct, WF + 4 * ct, HH + 4 * i)
            if i == 6: A(f"  v_add_u32 v{aWG+ct}, s{sRd}, v{aWG+ct}")
            for r in w_reads(ct, (i + 1) % 7): A(r)
            if ct == 1 and i < 4:
                ls = lab("gys")
                A(f"  s_cmp_ge_u32 s{sQ}, {17-PS}\n  s_cbranch_scc1 {ls}")
                A(y_op(i)); A(f"{ls}:")
            if ct == 2: A(x_op(i))
            if ct == 3: A(h_op(i))
    x_end(); y_end()
    A(f"  s_add_u32 s{sQ}, s{sQ}, 1\n  s_cmp_lg_u32 s{sQ}, 16\n  s_cbranch_scc0 L_g_done\n  s_barrier\n  s_branch L_g_loop")
    A(f"""{lx}:
  s_mov_b32 s{rX}, s{rB}
  s_mov_b32 s{rX+1}, s{rB+1}
  s_mov_b32 s{rX+2}, s{rB+2}
  v_mov_b32 v{vXs}, v{vWo}
  s_sub_u32 s{sXsrc}, s{sXlds}, s{sWl}
  s_lshl_b32 s{sXsrc}, s{sXsrc}, 4
  s_mov_b32 s{sXstep}, 65536
  s_branch {lx2}
{ly}:
  s_mov_b32 s{rY}, s{rB}
  s_mov_b32 s{rY+1}, s{rB+1}
  s_mov_b32 s{rY+2}, s{rB+2}
  v_mov_b32 v{vYs}, v{vWo}
  s_sub_u32 s{sYsrc}, s{sYlds}, s{sWl}
  s_lshl_b32 s{sYsrc}, s{sYsrc}, 4
  s_mov_b32 s{sYstep}, 65536
  s_branch {ly2}
L_g_done:""")
    stamp(8)
    A(f"""  s_lshl_b32 s{sT0}, s2, 15
  s_lshl_b32 s{sT1}, s{sW}, 13
  s_add_u32 s{sT0}, s{sT0}, s{sT1}
  s_add_u32 s{sT0}, s{sT0}, {PF}
  s_nop 7""")
    for i in range(8): A(f"  buffer_store_dwordx4 {vr(GA+32+4*i,4)}, v{10 if i < 4 else 11}, {sr(rWs,4)}, s{sT0} offen offset:{(i&3)*1024} sc1")
    sPsrc = sU0; sOb = sU1; sOo = sU2; sIt = sU3
    A(f"""  s_xor_b32 s{sPsrc}, s{sT0}, {4<<15}
  s_lshl_b32 s{sT0}, s2, 7
  s_lshl_b32 s{sT1}, s{sW}, 2
  s_add_u32 s{sT0}, s{sT0}, s{sT1}
  s_add_u32 s{sU4}, s{sT0}, {FP}
  s_waitcnt vmcnt(0) lgkmcnt(0)""")
    assert (PF & (4 << 15)) == 0 and (FP & (4 << 7)) == 0
    flag_store(f"s{sU4}")
    A("  s_barrier")
    OO = 96
    A(f"""  s_and_b32 s{sIt}, s{sCbb}, 3
  s_lshl_b32 s{sT0}, s{sIt}, 15
  v_add_u32 v12, s{sT0}, v12
  v_add_u32 v13, s{sT0}, v13""")
    def wo_reads(slot, st):
        return [f"  ds_read_b64_tr_b16 {vr(WF+4*slot+2*j,2)}, v{12+(slot&1)} offset:{st*2048+j*1024}" for j in range(2)]
    for sl in range(4):
        for r in wo_reads(sl, sl >> 1): A(r)
    A(f"""  v_lshlrev_b32 v3, 2, v{vLane}
  s_lshl_b32 s{sT0}, s{sRb2}, 8
  s_add_u32 s{sT0}, s{sT0}, {FO}
  s_lshl_b32 s{sOb}, s{sRb2}, 2
  s_add_u32 s{sOb}, s{sOb}, s{sW}
  s_lshl_b32 s{sOb}, s{sOb}, 16
  s_add_u32 s{sOb}, s{sOb}, {OF}
  v_add_u32 v14, 0x2000, v10
  v_add_u32 v15, 0x3000, v10""")
    stamp(9)
    poll(3, rWs, f"s{sT0}", 1, "1")
    stamp(10)
    def o_op(i):
        return f"  buffer_load_dwordx4 {vr(OO+4*i,4)}, v{(10,11,14,15)[i>>2]}, {sr(rWs,4)}, s{sOo} offen offset:{(i&3)*1024} sc1"
    A(f"  s_lshl_b32 s{sOo}, s{sIt}, 14\n  s_add_u32 s{sOo}, s{sOo}, s{sOb}")
    for i in range(16): A(o_op(i))
    A(f"  s_mov_b32 s{sQ}, 0\n.p2align 6\nL_w_loop:")
    A(f"""  s_add_u32 s{sIt}, s{sIt}, 1
  s_and_b32 s{sIt}, s{sIt}, 3
  s_mov_b32 s{sRd}, 32768
  s_cselect_b32 s{sRd}, s{sRd}, {(-3*32768) & 0xffffffff}
  s_lshl_b32 s{sOo}, s{sIt}, 14
  s_add_u32 s{sOo}, s{sOo}, s{sOb}
  s_cmp_eq_u32 s{sQ}, 3
  s_cselect_b32 s{sOo}, 0x7f000000, s{sOo}""")
    for st in range(16):
        for ct in range(2):
            sl = (st & 1) * 2 + ct
            A(f"  s_waitcnt {'vmcnt(15) ' if ct == 0 else ''}lgkmcnt(6)")
            mfma(AA + 16 * ct, WF + 4 * sl, OO + 4 * st)
            if st == 14: A(f"  v_add_u32 v{12+ct}, s{sRd}, v{12+ct}")
            for r in wo_reads(sl, (st + 2) % 16): A(r)
            if ct == 1: A(o_op(st))
    A(f"  s_add_u32 s{sQ}, s{sQ}, 1\n  s_cmp_lg_u32 s{sQ}, 4\n  s_cbranch_scc1 L_w_loop")
    stamp(11)
    A(f"  s_xor_b32 s{sT0}, s{sU4}, {4<<7}\n  v_mov_b32 v3, 0")
    poll(3, rWs, f"s{sT0}", 1, "1")
    for i in range(8): A(f"  buffer_load_dwordx4 {vr(PR+4*i,4)}, v{10 if i < 4 else 11}, {sr(rWs,4)}, s{sPsrc} offen offset:{(i&3)*1024} sc1")
    srd(rA, pOut, 2048 * 1024 * 2)
    A(f"""  v_and_b32 v2, 31, v{vLane}
  v_lshlrev_b32 v3, 2, v2
  s_lshl_b32 s{sT0}, s{sRb2}, 7
  s_lshl_b32 s{sT1}, s{sW}, 5
  s_add_u32 s{sT0}, s{sT0}, s{sT1}
  s_lshl_b32 s{sT1}, s{sT0}, 2
  s_add_u32 s{sT1}, s{sT1}, {GF}
  buffer_load_dword v4, v3, {sr(rWs,4)}, s{sT1} offen sc1
  v_lshrrev_b32 v5, 5, v{vLane}
  v_lshlrev_b32 v5, 4, v5
  v_lshl_add_u32 v2, v2, 11, v5
  s_lshl_b32 s{sT0}, s{sT0}, 11
  s_lshl_b32 s{sT1}, s{sCbb}, 8
  s_add_u32 s{sT0}, s{sT0}, s{sT1}
  s_lshl_b32 s{sT1}, s{sKh}, 7
  s_add_u32 s{sT0}, s{sT0}, s{sT1}
  s_waitcnt vmcnt(0) lgkmcnt(0)
  v_sub_f32 v5, 1.0, v4""")
    for g in range(4):
        for i in range(8 * g, 8 * g + 8):
            A(f"  v_add_f32 v{GA+i}, v{GA+i}, v{PR+i}\n  v_mul_f32 v{AA+i}, v4, v{AA+i}\n  v_fmac_f32 v{AA+i}, v5, v{GA+i}")
        pk = OO + 4 * g
        for i in range(4): A(f"  v_cvt_pk_bf16_f32 v{pk+i}, v{AA+8*g+2*i}, v{AA+8*g+2*i+1}")
        A(f"  s_nop 1\n  v_permlane32_swap_b32 v{pk}, v{pk+2}\n  v_permlane32_swap_b32 v{pk+1}, v{pk+3}")
        A(f"  buffer_store_dwordx4 {vr(pk,4)}, v2, {sr(rA,4)}, s{sT0} offen offset:{g*32}")
    if P["PROF"]:
        A("  s_waitcnt vmcnt(0)")
        stamp(2)
    dump_stamps()
    A("L_exit:")
    body = "\n".join(L)
    hdr = open("cdna_kernels/" + NAME + ".s.ref").read().split("; Override launch")[0]
    return hdr + f"""; Generated by gen/gen.py (hand-written generator). One persistent workgroup per CU.
; @launch grid=(256,1,1) block=(512,1,1) lds={LDS_BYTES}
.amdgcn_target "amdgcn-amd-amdhsa--gfx950"
.text
.globl {NAME}_kernel
.p2align 8
.type {NAME}_kernel,@function
{NAME}_kernel:
{body}
  s_endpgm
.section .rodata,"a"
.p2align 6
.amdhsa_kernel {NAME}_kernel
  .amdhsa_next_free_vgpr 256
  .amdhsa_next_free_sgpr 102
  .amdhsa_accum_offset 256
  .amdhsa_group_segment_fixed_size 0
  .amdhsa_kernarg_size 112
  .amdhsa_user_sgpr_count 2
  .amdhsa_user_sgpr_kernarg_segment_ptr 1
  .amdhsa_system_sgpr_workgroup_id_x 1
.end_amdhsa_kernel
"""

if __name__ == "__main__":
    out = sys.argv[1]
    kw = {a.split("=")[0]: int(a.split("=")[1], 0) for a in sys.argv[2:]}
    txt = gen(**kw)
    open(out, "w").write(txt)
    sys.path.insert(0, "gen")
    import lint
    r = lint.lint(txt)
    for x in r: print(f"HAZARD need {x[2]} have {x[3]}: L{x[0]} `{x[4]}` -> L{x[1]} `{x[5]}`")
    print(len(r), "hazards;", txt.count("\n"), "lines")
```
